```python
import torch

def _softmax(x, axis=-1):
    return torch.softmax(x, dim=axis)
def _gelu(x):
    return torch.nn.functional.gelu(x, approximate="tanh")
def _silu(x):
    return torch.nn.functional.silu(x)
def _sigmoid(x):
    return torch.sigmoid(x)
def _layernorm(x, axis=-1, eps=1e-5):
    m = x.mean(dim=axis, keepdim=True)
    v = x.var(dim=axis, keepdim=True, unbiased=False)
    return (x - m) / torch.sqrt(v + eps)
def _scatter_add(tgt, idx, src, axis=0):
    return tgt.clone().index_add_(axis, idx, src)
def _segment_sum(src, seg, n):
    out = torch.zeros((n,) + src.shape[1:], dtype=src.dtype)
    return out.index_add_(0, seg, src)
def _pad(x, pw):
    flat = tuple(v for pair in reversed(pw) for v in pair)
    return torch.nn.functional.pad(x, flat)

kernel_name = 'gated_mix__linear_kernel_hedgehog__ssm_conv_s5__prompt'

def setup_inputs():

    _w = (lambda a: (lambda t: t.to(torch.bfloat16) if t.is_floating_point() else t)(torch.as_tensor(a)))
    def _A_setup():
        B, S, D, H = 1, 2048, 512, 32
        Dh = D // H
        return {
            "x": _w((lambda *s: torch.randn(*s, dtype=torch.bfloat16) * 0.05)(B, S, D)),
            "wqkv": _w((lambda *s: torch.randn(*s, dtype=torch.bfloat16) * 1.6)(D, 3 * D)),
            "w_phi": _w((lambda *s: torch.randn(*s, dtype=torch.bfloat16) * 1.6)(H, Dh, Dh) * (Dh ** -0.5)),
            "wo": _w((lambda *s: torch.randn(*s, dtype=torch.bfloat16) * 0.05)(D, D)),
        }
    _A_in = _A_setup()

    def _B_setup():
        B, S, D = 1, 2048, 512
        P = D
        Lambda_re = -0.5 * (lambda _x: torch.exp(torch.as_tensor(_x)))((lambda *s: torch.randn(*s, dtype=torch.bfloat16) * 0.8)(P))
        Lambda_im = (lambda *s: torch.randn(*s, dtype=torch.bfloat16) * 0.8)(P) * 1.0
        B_re = (lambda *s: torch.randn(*s, dtype=torch.bfloat16) * 0.8)(P, D) * (D ** -0.5)
        B_im = (lambda *s: torch.randn(*s, dtype=torch.bfloat16) * 0.8)(P, D) * (D ** -0.5)
        C_re = (lambda *s: torch.randn(*s, dtype=torch.bfloat16) * 0.8)(D, P) * (P ** -0.5)
        C_im = (lambda *s: torch.randn(*s, dtype=torch.bfloat16) * 0.8)(D, P) * (P ** -0.5)
        log_dt = (lambda *s: torch.randn(*s, dtype=torch.bfloat16) * 0.8)(P) * 0.3 - 2.0
        Dskip = (lambda *s: torch.randn(*s, dtype=torch.bfloat16) * 0.8)(D)
        return {
            "x": _w((lambda *s: torch.randn(*s, dtype=torch.bfloat16) * 0.05)(B, S, D)),
            "Lambda_re": _w(Lambda_re),
            "Lambda_im": _w(Lambda_im),
            "B_re": _w(B_re),
            "B_im": _w(B_im),
            "C_re": _w(C_re),
            "C_im": _w(C_im),
            "log_dt": _w(log_dt),
            "Dskip": _w(Dskip),
        }
    _B_in = _B_setup()

    return {
        "A_x": _A_in["x"],
        "A_wqkv": _A_in["wqkv"],
        "A_w_phi": _A_in["w_phi"],
        "A_wo": _A_in["wo"],
        "B_x": _B_in["x"],
        "B_Lambda_re": _B_in["Lambda_re"],
        "B_Lambda_im": _B_in["Lambda_im"],
        "B_B_re": _B_in["B_re"],
        "B_B_im": _B_in["B_im"],
        "B_C_re": _B_in["C_re"],
        "B_C_im": _B_in["C_im"],
        "B_log_dt": _B_in["log_dt"],
        "B_Dskip": _B_in["Dskip"],
        "gate_w": _w((lambda *s: torch.randn(*s, dtype=torch.bfloat16) * 0.05)(512) * 16.0),
    }

def reference(A_x, A_wqkv, A_w_phi, A_wo, B_x, B_Lambda_re, B_Lambda_im, B_B_re, B_B_im, B_C_re, B_C_im, B_log_dt, B_Dskip, gate_w):
    def _A_ref(x, wqkv, w_phi, wo):
        B, S, D = x.shape
        H = 32; Dh = D // H
        qkv = (lambda x, *d: x.permute(*d))((x @ wqkv).reshape(B, S, 3, H, Dh), 2, 0, 3, 1, 4)
        q, k, v = qkv[0], qkv[1], qkv[2]
        pq = torch.einsum("bhsd,hdf->bhsf", q, w_phi)
        pk = torch.einsum("bhsd,hdf->bhsf", k, w_phi)
        phi_q = torch.concatenate([_softmax(pq, axis=-1), _softmax(-pq, axis=-1)], axis=-1)
        phi_k = torch.concatenate([_softmax(pk, axis=-1), _softmax(-pk, axis=-1)], axis=-1)
        kv = torch.einsum("bhsf,bhsd->bhfd", phi_k, v)
        z  = torch.einsum("bhsf->bhf", phi_k)
        num = torch.einsum("bhqf,bhfd->bhqd", phi_q, kv)
        den = torch.einsum("bhqf,bhf->bhq", phi_q, z)[..., None] + 1e-6
        o = num / den
        return (lambda x, *d: x.permute(*d))(o, 0, 2, 1, 3).reshape(B, S, D) @ wo

    def _B_ref(x, Lambda_re, Lambda_im, B_re, B_im, C_re, C_im, log_dt, Dskip):
        Bsz, L, H = x.shape
        Lam = Lambda_re + 1j * Lambda_im
        Bmat = B_re + 1j * B_im
        Cmat = C_re + 1j * C_im
        dt = torch.exp(log_dt)
        Lam_bar = torch.exp(dt * Lam)
        B_bar = ((Lam_bar - 1.0) / Lam)[:, None] * Bmat
        Bu = torch.einsum("bld,pd->blp", x + 0j, B_bar)
        h = torch.zeros_like(Bu[:, 0, :])
        hs = []
        for t in range(L):
            h = Lam_bar[None, :] * h + Bu[:, t, :]
            hs.append(h)
        hseq = torch.stack(hs, 1)
        y = 2.0 * torch.einsum("blp,dp->bld", hseq, Cmat).real + x * Dskip[None, None, :]
        return y

    x = A_x
    g = _sigmoid((x * gate_w).sum(-1, keepdims=True))
    a = _A_ref(x, A_wqkv, A_w_phi, A_wo)
    b = _B_ref(x, B_Lambda_re, B_Lambda_im, B_B_re, B_B_im, B_C_re, B_C_im, B_log_dt, B_Dskip)
    return g * a + (1 - g) * b
```

```python
NAME = "gated_mix__linear_kernel_hedgehog__ssm_conv_s5__prompt"
KA = dict(x=0, wqkv=8, wphi=16, wo=24, bx=32, lre=40, lim=48, bre=56, bim=64, cre=72, cim=80, ldt=88, dskip=96, gw=104, out=112, dbg=120, ws=128)
SZ = dict(x=2048*512*2, wqkv=512*1536*2, wphi=32*16*16*2, wo=512*512*2, bx=2048*512*2, lre=1024, lim=1024, bre=512*512*2, bim=512*512*2,
          cre=512*512*2, cim=512*512*2, ldt=1024, dskip=1024, gw=1024, out=2048*512*4, dbg=256, ws=268435456)

class K:
    def __init__(self, name, grid, block, lds, vgpr=256, sgpr=102, accum=None):
        self.name = name; self.grid = grid; self.block = block; self.lds = lds
        self.vgpr = vgpr; self.sgpr = sgpr; self.accum = accum
        self.lines = []; self._lab = 0
    def __call__(self, s=""):
        for l in s.split("\n"):
            l = l.strip()
            if not l: continue
            self.lines.append(l if l.endswith(":") else "    " + l)
    def label(self, base="L"):
        self._lab += 1
        return f"{self.name[:8]}_{base}{self._lab}"
    def srd(self, s, lo, hi, nbytes):
        self(f"s_mov_b32 s{s}, s{lo}\ns_and_b32 s{s+1}, s{hi}, 0xffff\ns_mov_b32 s{s+2}, {nbytes}\ns_mov_b32 s{s+3}, 0x20000")
    def text(self):
        return (f".globl {self.name}\n.p2align 8\n.type {self.name},@function\n{self.name}:\n" + "\n".join(self.lines) + "\n")
    def desc(self):
        acc = self.accum if self.accum is not None else min(256, (self.vgpr + 3) // 4 * 4)
        return (f".p2align 6\n.amdhsa_kernel {self.name}\n  .amdhsa_next_free_vgpr {self.vgpr}\n  .amdhsa_next_free_sgpr {self.sgpr}\n"
                f"  .amdhsa_accum_offset {acc}\n  .amdhsa_group_segment_fixed_size 0\n  .amdhsa_kernarg_size 136\n  .amdhsa_user_sgpr_count 2\n"
                f"  .amdhsa_user_sgpr_kernarg_segment_ptr 1\n  .amdhsa_system_sgpr_workgroup_id_x 1\n.end_amdhsa_kernel\n")

def write(path, kernels, launches=None, header=""):
    launches = launches or kernels
    s = header
    for k in launches:
        s += f"; @launch kernel={k.name} grid=({k.grid[0]},{k.grid[1]},{k.grid[2]}) block=({k.block[0]},{k.block[1]},{k.block[2]}) lds={k.lds}\n"
    s += '.amdgcn_target "amdgcn-amd-amdhsa--gfx950"\n.text\n'
    for k in kernels: s += k.text()
    s += '.section .rodata,"a"\n'
    for k in kernels: s += k.desc()
    open(path, "w").write(s)
```

```python
import re, copy

def _regs(tok):
    t = tok.strip()
    t = re.sub(r'^-', '', t)
    m = re.match(r'^(?:abs|neg)\((.*)\)$', t)
    if m: t = m.group(1)
    t = t.strip('|')
    m = re.match(r'^([vas])(\d+)$', t)
    if m: return [m.group(1) + m.group(2)]
    m = re.match(r'^([vas])\[(\d+):(\d+)\]$', t)
    if m: return [m.group(1) + str(i) for i in range(int(m.group(2)), int(m.group(3)) + 1)]
    if t in ('vcc', 'vcc_lo', 'vcc_hi'): return ['vcc']
    if t in ('exec', 'exec_lo', 'exec_hi'): return ['exec']
    if t == 'm0': return ['m0']
    return []

TRANS = ('v_exp_', 'v_log_', 'v_rcp_', 'v_rsq_', 'v_sqrt_', 'v_sin_', 'v_cos_')

class Ins:
    __slots__ = ('text', 'op', 'dst', 'src', 'kind', 'passes', 'srcC', 'srcAB', 'dpp', 'lds', 'wide', 'data', 'sgsrc')
    def __init__(self, text):
        self.text = text
        t = text.split(';')[0].strip()
        parts = t.split(None, 1)
        op = parts[0]; self.op = op
        rest = parts[1] if len(parts) > 1 else ''
        ops = []; depth = 0; cur = ''
        for ch in rest:
            if ch in '[(': depth += 1
            if ch in '])': depth -= 1
            if ch == ',' and depth == 0: ops.append(cur.strip()); cur = ''
            else: cur += ch
        if cur.strip(): ops.append(cur.strip())
        mods = ''
        if ops:
            l = ops[-1].split(None, 1)
            ops[-1] = l[0]; mods = l[1] if len(l) > 1 else ''
        R = [_regs(o) for o in ops]
        self.dst = []; self.src = []; self.passes = 0; self.srcC = []; self.srcAB = []
        self.dpp = ('quad_perm' in mods or 'row_' in mods or 'wave_' in mods or op.endswith('_dpp'))
        self.lds = False; self.wide = False; self.data = []
        flat = lambda L: [x for y in L for x in y]
        if op.startswith('v_mfma'):
            self.kind = 'mfma'; self.dst = R[0]; self.srcAB = R[1] + R[2]; self.srcC = R[3]; self.src = self.srcAB + self.srcC
            self.passes = 8 if '32x32' in op else 4
        elif op.startswith('v_'):
            self.kind = 'trans' if op.startswith(TRANS) else 'valu'
            if op.startswith('v_permlane') and 'swap' in op:
                self.dst = R[0] + R[1]; self.src = R[0] + R[1]; self.kind = 'perm'
            elif op.startswith('v_cmpx'):
                self.dst = R[0] + ['exec']; self.src = flat(R[1:])
            elif op.startswith('v_add_co') or op.startswith('v_sub_co') or op.startswith('v_addc') or op.startswith('v_subb'):
                self.dst = R[0] + R[1]; self.src = flat(R[2:])
            elif op == 'v_nop':
                pass
            else:
                self.dst = R[0]; self.src = flat(R[1:])
                if op.startswith(('v_fmac', 'v_mac', 'v_dot2c', 'v_pk_fmac', 'v_writelane')) or self.dpp: self.src = self.src + R[0]
                if op.startswith('v_cndmask') and len(R) == 3: self.src.append('vcc')
        elif op.startswith('ds_'):
            self.kind = 'ds'
            if op.startswith(('ds_read', 'ds_bpermute', 'ds_permute', 'ds_swizzle')):
                self.dst = R[0]; self.src = flat(R[1:])
            else:
                self.src = flat(R)
        elif op.startswith('buffer_'):
            self.kind = 'vm'
            mm = mods.split()
            if 'lds' in mm:
                self.lds = True; self.src = flat(R) + ['m0']
            elif op.startswith('buffer_load'):
                self.dst = R[0]; self.src = flat(R[1:])
            else:
                self.src = flat(R); self.data = R[0]; self.wide = len(R[0]) >= 3
                if op.startswith('buffer_atomic') and 'sc0' in mm: self.dst = R[0]
        elif op.startswith(('s_load', 's_memtime', 's_memrealtime', 's_buffer_load')):
            self.kind = 'smem'; self.dst = R[0]; self.src = flat(R[1:])
        elif op in ('s_nop', 's_waitcnt', 's_barrier', 's_endpgm', 's_setprio', 's_sleep') or op.startswith(('s_branch', 's_cbranch')):
            self.kind = 'ctl'
            if op in ('s_cbranch_vccz', 's_cbranch_vccnz'): self.src = ['vcc']
            if op in ('s_cbranch_execz', 's_cbranch_execnz'): self.src = ['exec']
        elif op.startswith('s_'):
            self.kind = 'salu'
            if op.startswith('s_cmp') or op.startswith('s_bitcmp'): self.src = flat(R)
            else:
                self.dst = R[0]; self.src = flat(R[1:])
                if 'saveexec' in op: self.dst = self.dst + ['exec']; self.src = self.src + ['exec']
                if op.startswith(('s_addk', 's_mulk')): self.src = self.src + R[0]
        else:
            raise ValueError("unknown instruction: " + text)

class State:
    def __init__(s):
        s.t = 0
        s.valu_w = {}
        s.trans_w = {}
        s.mfma_w = {}
        s.mfma_c = {}
        s.store_d = {}
        s.m0_w = -100
        s.vm_n = 0; s.vm_done = 0
        s.lg_n = 0; s.lg_done = 0
        s.vm_p = {}; s.lg_p = {}
        s.smem = False
        s.smem_p = set()

class E:
    def __init__(self, prefix):
        self.lines = []; self.st = State(); self._lab = 0; self.prefix = prefix; self.nops = 0; self.count = 0
    def label(self, base="L"):
        self._lab += 1
        return f"{self.prefix}_{base}{self._lab}"
    def raw(self, s): self.lines.append(s)
    def _out(self, text, states=1):
        self.lines.append("    " + text); self.st.t += states; self.count += 1
    def nop(self, n):
        while n > 0:
            k = min(n, 16); self._out(f"s_nop {k-1}", k); n -= k; self.nops += 1
    def vm_token(self): return self.st.vm_n
    def lg_token(self): return self.st.lg_n
    def wait(self, vm=None, lg=None):
        st = self.st; parts = []
        if vm is not None and vm > st.vm_done:
            n = min(st.vm_n - vm, 63); parts.append(f"vmcnt({n})"); st.vm_done = st.vm_n - n
            st.vm_p = {r: q for r, q in st.vm_p.items() if q >= st.vm_done}
        if lg is not None and (lg > st.lg_done or (st.smem and lg == 'all')):
            n = 0 if st.smem else min(st.lg_n - lg, 15); parts.append(f"lgkmcnt({n})"); st.lg_done = st.lg_n - n
            st.lg_p = {r: q for r, q in st.lg_p.items() if q >= st.lg_done}
            if n == 0: st.smem = False; st.smem_p = set()
        if parts: self._out("s_waitcnt " + " ".join(parts))
    def wait_smem(self):
        st = self.st
        self._out("s_waitcnt lgkmcnt(0)"); st.lg_done = st.lg_n; st.lg_p = {}; st.smem = False; st.smem_p = set()
    def drain(self, vm=True, lg=True):
        st = self.st; parts = []
        if vm: parts.append("vmcnt(0)"); st.vm_done = st.vm_n; st.vm_p = {}
        if lg: parts.append("lgkmcnt(0)"); st.lg_done = st.lg_n; st.lg_p = {}; st.smem = False; st.smem_p = set()
        self._out("s_waitcnt " + " ".join(parts))
    def settle(self):
        st = self.st; need = 0
        for r, t in st.valu_w.items(): need = max(need, t + 1 + 5 - st.t if r[0] == 's' or r in ('vcc', 'exec') else t + 1 + 2 - st.t)
        for r, (t, p, *_) in st.mfma_w.items(): need = max(need, t + 1 + (12 if p == 8 else 8) - st.t)
        for r, (t, p) in st.mfma_c.items(): need = max(need, t + 1 + (7 if p == 8 else 3) - st.t)
        for r, t in st.store_d.items(): need = max(need, t + 1 + 2 - st.t)
        need = max(need, st.m0_w + 1 + 1 - st.t)
        if need > 0: self.nop(need)
    def fork(self): return copy.deepcopy(self.st)
    def restore(self, st): self.st = copy.deepcopy(st)
    def __call__(self, s):
        if isinstance(s, (list, tuple)):
            for x in s: self(x)
            return
        if callable(s): s(); return
        for l in s.split("\n"):
            l = l.strip()
            if not l or l.startswith(';'): continue
            if l.endswith(":"): self.lines.append(l); continue
            self.ins(l)
    def ins(self, text):
        i = Ins(text); st = self.st
        if i.op == 's_nop':
            self._out(text, int(text.split()[1], 0) + 1); return
        if i.op == 's_waitcnt': raise ValueError("use wait()/drain()")
        touched = i.src + i.dst
        if any(r in st.smem_p for r in touched): self.wait_smem()
        vq = [st.vm_p[r] for r in touched if r in st.vm_p]
        lq = [st.lg_p[r] for r in touched if r in st.lg_p]
        if vq or lq: self.wait(vm=(max(vq) + 1) if vq else None, lg=(max(lq) + 1) if lq else None)
        need = 0
        def req(t, ws):
            nonlocal need
            need = max(need, t + 1 + ws - st.t)
        isv = i.kind in ('valu', 'trans', 'perm')
        for r in i.src:
            if r in st.valu_w:
                t = st.valu_w[r]; sg = (r[0] == 's' or r == 'vcc')
                if i.kind == 'mfma': req(t, 4 if r == 'exec' else 2)
                if sg and i.kind == 'vm': req(t, 5)
                if sg and isv: req(t, 4 if i.op.startswith(('v_readlane', 'v_writelane')) else 2)
                if sg and i.kind in ('salu', 'ctl', 'smem'): req(t, 1 if r != 'vcc' else 5)
                if r == 'exec' and i.kind in ('salu', 'ctl'): req(t, 5)
                if not sg and i.dpp: req(t, 2)
                if not sg and i.kind == 'perm': req(t, 2)
                if not sg and i.op.startswith(('v_readlane', 'v_readfirstlane')): req(t, 1)
            if r in st.trans_w and (isv or i.kind == 'mfma'): req(st.trans_w[r], 1)
        if 'exec' in st.valu_w:
            t = st.valu_w['exec']
            if i.dpp: req(t, 5)
            if i.kind in ('mfma', 'perm') or i.op.startswith(('v_readlane', 'v_readfirstlane', 'v_writelane')): req(t, 4)
        if i.kind == 'mfma':
            for r in i.srcAB:
                if r in st.mfma_w: t, p, *_ = st.mfma_w[r]; req(t, 12 if p == 8 else 8)
            for r in i.srcC:
                if r in st.mfma_w:
                    t, p, f, n = st.mfma_w[r]
                    if not (p == i.passes and f == i.srcC[0] and n == len(i.srcC)): req(t, 10 if p == 8 else 6)
            if i.srcC != i.dst:
                for r in i.dst:
                    if r in st.mfma_w: t, p, *_ = st.mfma_w[r]; req(t, 12 if p == 8 else 8)
        elif isv or i.kind in ('vm', 'ds'):
            for r in touched:
                if r in st.mfma_w: t, p, *_ = st.mfma_w[r]; req(t, 12 if p == 8 else 8)
        if isv or i.kind in ('vm', 'ds'):
            for r in i.dst:
                if r in st.mfma_c: t, p = st.mfma_c[r]; req(t, 7 if p == 8 else 3)
                if r in st.store_d: req(st.store_d[r], 2)
        if i.kind == 'mfma':
            for r in i.dst:
                if r in st.store_d: req(st.store_d[r], 2)
        if i.lds: req(st.m0_w, 1)
        if need > 0: self.nop(need)
        t = st.t
        self._out(text)
        for r in i.dst:
            st.valu_w.pop(r, None); st.trans_w.pop(r, None); st.mfma_w.pop(r, None)
        if isv:
            for r in i.dst: st.valu_w[r] = t
            if i.kind == 'trans':
                for r in i.dst: st.trans_w[r] = t
        if i.kind == 'mfma':
            for r in i.dst: st.mfma_w[r] = (t, i.passes, i.dst[0], len(i.dst))
            for r in i.srcC: st.mfma_c[r] = (t, i.passes)
        if i.kind == 'salu' and 'm0' in i.dst: st.m0_w = t
        if i.kind == 'vm':
            for r in i.dst: st.vm_p[r] = st.vm_n
            if i.wide:
                for r in i.data: st.store_d[r] = t
            st.vm_n += 1
        if i.kind == 'ds':
            for r in i.dst: st.lg_p[r] = st.lg_n
            st.lg_n += 1
        if i.kind == 'smem':
            st.smem = True; st.smem_p |= set(i.dst)

def cost(text):
    op = text.split()[0]
    if op.startswith('v_mfma'): return 8
    if op.startswith(TRANS): return 8
    if op.startswith('ds_write'): return 8
    if op.startswith('s_'): return 2
    return 4

def weave(main, fill, budget=24):
    out = []; fi = 0
    for g in main:
        c = 0
        for x in g:
            out.append(x)
            if isinstance(x, str): c += cost(x)
        while fi < len(fill):
            x = fill[fi]
            cx = cost(x) if isinstance(x, str) else 0
            if c + cx > budget + 8: break
            out.append(x); c += cx; fi += 1
    out += fill[fi:]
    return out
```

```python
import sys; sys.path.insert(0, "dev")
from emit import E, weave
from asmgen import NAME, SZ

WS_EPOCH = 0x0
WS_FLAG  = 0x1000
WS_KV    = 0x10000
WS_Z     = 0x90000
WS_G     = 0xA0000
WS_SB    = 0xB0000
WS_A2    = 0x200000
WS_DBG   = 0x1000000
WS_TIME  = 0x900000
SLOT = 8192
MISC = 19 * SLOT
GT, GZ, WP = MISC, MISC + 2048 + 64, MISC + 4096
PH  = 8 * SLOT
VF  = 12 * SLOT
HX  = 16 * SLOT
KVT = 17 * SLOT
RED = 8 * SLOT
LOG2E = 0x3FB8AA3B
P = dict(x=4, wqkv=6, wphi=8, wo=10, bx=12, lre=14, lim=16, bre=18, bim=20, cre=22, cim=24, ldt=26, dskip=28, gw=30, out=32, dbg=34, ws=36)
SX, SWQ, SB0, SB1, SWS, SWO, SCR, SCI, SOUT, STMP = 40, 44, 48, 52, 56, 60, 64, 68, 72, 76
sW, sTB, sGRP, sKB0, sTAG, sKB, sT0, sT1, sT2, sT3, sXO, sWO_, sSPIN, sISB, sN0, sTK0 = range(80, 96)
sL = 96
sM0 = 98
sTS = 12
def srd(n): return f"s[{n}:{n+3}]"
def v(a, n=1): return f"v{a}" if n == 1 else f"v[{a}:{a+n-1}]"
def a_(a, n=1): return f"a{a}" if n == 1 else f"a[{a}:{a+n-1}]"
MF32 = "v_mfma_f32_32x32x16_bf16"; MF16 = "v_mfma_f32_16x16x32_bf16"

class RA:
    def __init__(s, n=256, start=1): s.free = set(range(start, n)); s.peak = 0
    def get(s, n=1, al=None):
        al = al or (1 if n == 1 else 2 if n == 2 else 4)
        for b in range(0, 256, al):
            if all((b + i) in s.free for i in range(n)):
                for i in range(n): s.free.discard(b + i)
                s.peak = max(s.peak, b + n); return b
        raise RuntimeError(f"out of VGPRs for {n}")
    def put(s, b, n=1):
        for i in range(n):
            assert (b + i) not in s.free
            s.free.add(b + i)
    def copy(s):
        r = RA(); r.free = set(s.free); r.peak = s.peak; return r

class Gen:
    def __init__(g, opt):
        g.o = opt; g.e = E("gm"); g.R = RA(); g.dumps = []; g.nts = 0
    def mksrd(g, s, name):
        p = P[name]
        g.e(f"s_mov_b32 s{s}, s{p}\ns_and_b32 s{s+1}, s{p+1}, 0xffff\ns_mov_b32 s{s+2}, {SZ[name]}\ns_mov_b32 s{s+3}, 0x20000")
    def dump(g, name, regs, role):
        if name not in g.o.get('dump', ()): return
        e = g.e
        key = (name, role)
        off = WS_DBG + len(g.dumps) * 0x1400000
        g.dumps.append((name, role, off, len(regs)))
        t = g.R.get()
        e(f"s_lshl_b32 s{sT0}, s2, 2\ns_add_u32 s{sT0}, s{sT0}, s{sW}\ns_mul_i32 s{sT0}, s{sT0}, {len(regs)*256}\ns_add_u32 s{sT0}, s{sT0}, {off}")
        e(f"v_lshlrev_b32 v{t}, 2, v0")
        for i, r in enumerate(regs):
            e(f"buffer_store_dword {r if isinstance(r, str) else 'v%d' % r}, v{t}, {srd(SWS)}, s{sT0} offen")
            e(f"s_add_u32 s{sT0}, s{sT0}, 256")
        e.drain(lg=False)
        g.R.put(t)
    def stamp(g, i):
        if not g.o.get('time'): return
        assert i < 12
        g.e(f"s_memtime s[{4+2*i}:{5+2*i}]")
        g.e.wait_smem()

    def prologue(g):
        e = g.e; R = g.R
        e(f"""s_cmp_ge_u32 s2, 256
        s_cbranch_scc1 gm_END
        s_load_dwordx16 s[4:19], s[0:1], 0
        s_load_dwordx16 s[20:35], s[0:1], 64
        s_load_dwordx2 s[36:37], s[0:1], 128""")
        if g.o.get('time'): e("s_memtime s[100:101]")
        t0, t1, t2, t3 = [R.get() for _ in range(4)]
        g.n = R.get(); g.hh = R.get(); g.G = R.get(); g.i16 = R.get()
        e(f"""v_lshrrev_b32 v{t0}, 6, v0
        v_and_b32 v0, 63, v0
        v_readfirstlane_b32 s{sW}, v{t0}
        s_and_b32 s{sT0}, s2, 7
        s_lshr_b32 s{sT1}, s2, 3
        s_and_b32 s{sT2}, s{sT1}, 7
        s_lshr_b32 s{sT3}, s{sT1}, 3
        s_and_b32 s{sTB}, s{sT0}, 1
        s_lshl_b32 s{sTB}, s{sTB}, 3
        s_add_u32 s{sTB}, s{sTB}, s{sT2}
        s_and_b32 s{sGRP}, s{sT0}, 6
        s_and_b32 s38, s{sT3}, 1
        s_add_u32 s{sGRP}, s{sGRP}, s38
        s_lshr_b32 s{sISB}, s{sT3}, 1
        s_lshl_b32 s38, s{sT3}, 1
        s_add_u32 s{sKB0}, s{sT2}, s38
        s_and_b32 s{sKB0}, s{sKB0}, 7
        s_lshl_b32 s{sN0}, s{sT2}, 6
        s_lshl_b32 s{sTK0}, s{sT0}, 8
        s_lshl_b32 s38, s{sT3}, 6
        s_add_u32 s{sTK0}, s{sTK0}, s38
        s_mov_b32 s{sL}, {LOG2E}
        s_mov_b32 s{sL+1}, {LOG2E}
        v_and_b32 v{g.n}, 31, v0
        v_lshrrev_b32 v{g.hh}, 5, v0
        v_lshrrev_b32 v{g.G}, 4, v0
        v_and_b32 v{g.i16}, 15, v0""")
        if not g.o.get('rot', 1): e(f"s_mov_b32 s{sKB0}, 0")
        g.vx = [R.get() for _ in range(4)]
        e(f"""v_lshrrev_b32 v{t0}, 3, v0
        v_and_b32 v{t1}, 7, v0
        v_xor_b32 v{t2}, v{t1}, v{g.G}
        v_lshlrev_b32 v{t2}, 4, v{t2}
        v_lshl_add_u32 v{t2}, v{t0}, 10, v{t2}
        s_lshl_b32 s38, s{sW}, 15
        v_add_u32 v{g.vx[0]}, s38, v{t2}
        v_xor_b32 v{t3}, 64, v{g.vx[0]}
        v_add_u32 v{g.vx[1]}, {7*1024}, v{t3}
        v_add_u32 v{g.vx[2]}, {14*1024}, v{g.vx[0]}
        v_add_u32 v{g.vx[3]}, {21*1024}, v{t3}""")
        g.vc = [t2, R.get()]
        e(f"v_xor_b32 v{g.vc[1]}, 64, v{t2}")
        g.l3 = t0
        g.ctr = t1
        e(f"""v_and_b32 v{t3}, 1, v{g.G}
        v_lshlrev_b32 v{t3}, 2, v{t3}
        v_xor_b32 v{t1}, v{t1}, v{t3}
        v_lshlrev_b32 v{t1}, 4, v{t1}""")
        R.put(t3)
        e.wait_smem()
        g.mksrd(SX, 'x'); g.mksrd(SWQ, 'wqkv')
        e(f"""s_lshl_b32 s38, s{sGRP}, 11
        s_and_b32 s39, s{sW}, 1
        s_lshl_b32 s39, s39, 10
        s_add_u32 s38, s38, s39
        s_mov_b32 s{STMP+2}, {SZ['gw']}
        s_mov_b32 s{sT0}, {GT}
        s_cmp_lt_u32 s{sW}, 2
        s_cselect_b32 s{STMP}, s{P['gw']}, s{P['wphi']}
        s_cselect_b32 s{STMP+1}, s{P['gw']+1}, s{P['wphi']+1}
        s_cselect_b32 s{STMP+2}, s{STMP+2}, {SZ['wphi']}
        s_cselect_b32 s38, 0, s38
        s_cselect_b32 s{sT0}, s{sT0}, {WP}
        s_and_b32 s{STMP+1}, s{STMP+1}, 0xffff
        s_mov_b32 s{STMP+3}, 0x20000
        s_add_u32 m0, s{sT0}, s39""")
        g.l16 = R.get()
        e(f"v_lshlrev_b32 v{g.l16}, 4, v0")
        e(f"buffer_load_dwordx4 v{g.l16}, {srd(STMP)}, s38 offen lds")
        e(f"""s_lshl_b32 s{sXO}, s{sTB}, 17
        s_mov_b32 s{sKB}, s{sKB0}
        s_cmp_lg_u32 s{sISB}, 0
        s_cbranch_scc1 gm_PATHB""")

    def dma_kblock(g, i, isB):
        e = g.e; st = (i % 4) * 32768
        e(f"s_lshl_b32 s38, s{sKB}, 7\ns_add_u32 s39, s{sXO}, s38\ns_lshl_b32 s{sT0}, s{sW}, 12\ns_add_u32 m0, s{sT0}, {st}")
        for j in range(4): e(f"buffer_load_dwordx4 v{g.vx[j]}, {srd(SX)}, s39 offen offset:{j*1024} lds")
        e(f"s_lshl_b32 s{sT0}, s{sW}, 11")
        if isB:
            e(f"s_add_u32 s39, s{sWO_}, s38\ns_add_u32 m0, s{sT0}, {st+16384}")
            for j in range(2): e(f"buffer_load_dwordx4 v{g.vw[j]}, {srd(SB0)}, s39 offen offset:{j*1024} lds")
            e(f"s_add_u32 m0, s{sT0}, {st+24576}")
            for j in range(2): e(f"buffer_load_dwordx4 v{g.vw[j]}, {srd(SB1)}, s39 offen offset:{j*1024} lds")
        else:
            e(f"s_mul_i32 s38, s{sKB}, {64*3072}\ns_add_u32 s39, s{sWO_}, s38\ns_add_u32 m0, s{sT0}, {st+16384}")
            for j in range(2): e(f"buffer_load_dwordx4 v{g.vw[j]}, {srd(SWQ)}, s39 offen offset:{j*1024} lds")
            e(f"s_add_u32 s39, s39, 1024\ns_add_u32 m0, s{sT0}, {st+24576}")
            for j in range(2): e(f"buffer_load_dwordx4 v{g.vw[j]}, {srd(SWQ)}, s39 offen offset:{j*1024} lds")
        e(f"s_add_u32 s{sKB}, s{sKB}, 1\ns_and_b32 s{sKB}, s{sKB}, 7")
    def dma_wq(g):
        e = g.e; t = g.R.get(); t2 = g.R.get()
        e(f"""v_lshrrev_b32 v{t}, 2, v0
        s_lshl_b32 s38, s{sW}, 4
        v_add_u32 v{t}, s38, v{t}
        v_mul_u32_u24 v{t}, 3072, v{t}
        v_and_b32 v{t2}, 3, v0
        v_lshl_add_u32 v{t}, v{t2}, 4, v{t}
        s_lshl_b32 s{sT1}, s{sGRP}, 7
        s_lshl_b32 s38, s{sISB}, 6
        s_add_u32 s{sT1}, s{sT1}, s38
        s_lshl_b32 s{sT0}, s{sW}, 10""")
        for i in range(8):
            e(f"""s_mul_i32 s38, s{sKB}, {64*3072}
            s_add_u32 s39, s{sT1}, s38
            s_add_u32 m0, s{sT0}, {i*4096}
            s_add_u32 s{sKB}, s{sKB}, 1
            buffer_load_dwordx4 v{t}, {srd(SWQ)}, s39 offen lds
            s_and_b32 s{sKB}, s{sKB}, 7""")
        g.R.put(t); g.R.put(t2)
    def w2_issue(g, u, slot_expr):
        e = g.e; c, ws_ = slot_expr
        e(f"s_mul_i32 s{sT0}, s{sW}, {ws_}\ns_add_u32 s{sT0}, s{sT0}, {c}")
        if u < 4:
            S = SCR if (u & 1) == 0 else SCI
            e(f"s_lshl_b32 s38, s{sN0}, 10\ns_lshl_b32 s39, s{sW}, 8\ns_add_u32 s38, s38, s39\ns_add_u32 s38, s38, {(u>>1)*128}")
            for j in range(8):
                if j % 4 == 0: e(f"s_add_u32 m0, s{sT0}, {(j//4)*4096}")
                e(f"s_add_u32 s39, s38, {j*8192 - (j&3)*1024}")
                e(f"buffer_load_dwordx4 v{g.vc[j&1]}, {srd(S)}, s39 offen offset:{(j&3)*1024} lds")
        else:
            e(f"s_lshl_b32 s38, s{sW}, 17\ns_lshl_b32 s39, s{sN0}, 1\ns_add_u32 s38, s38, s39\ns_add_u32 s38, s38, {(u-4)*65536}")
            for j in range(8):
                if j % 4 == 0: e(f"s_add_u32 m0, s{sT0}, {(j//4)*4096}")
                e(f"s_add_u32 s39, s38, {j*8192 - (j&3)*1024}")
                e(f"buffer_load_dwordx4 v{g.vo}, {srd(SWO)}, s39 offen offset:{(j&3)*1024} lds")
        g.w2tok[u] = e.vm_token(); g.w2slot[u] = slot_expr
    def w2_acc(g, u): return 128 + 32 * u if u < 4 else 32 * (u - 4)
    def w2_read(g, u):
        e = g.e; R = g.R; c, ws_ = g.w2slot[u]; A = g.w2_acc(u); out = []
        tok = g.w2tok[u]
        out.append(lambda: e.wait(vm=tok))
        out.append(f"s_mul_i32 s{sT0}, s{sW}, {ws_}"); out.append(f"s_add_u32 s{sT0}, s{sT0}, {c}")
        if u < 4:
            t = g.w2t
            out.append(f"v_add_u32 v{t[0]}, s{sT0}, v{g.cbase}")
            for ks in range(1, 4): out.append(f"v_xor_b32 v{t[ks]}, {ks<<5}, v{t[0]}")
            for ks in range(4):
                for ct in range(2): out.append(f"ds_read_b128 {a_(A + (ks*2+ct)*4, 4)}, v{t[ks]} offset:{ct*4096}")
        else:
            t = g.w2t
            out.append(f"v_add_u32 v{t[0]}, s{sT0}, v{g.trbase}"); out.append(f"v_xor_b32 v{t[1]}, 64, v{t[0]}")
            for ks in range(4):
                for ct in range(2):
                    for hf in range(2): out.append(f"ds_read_b64_tr_b16 {a_(A + (ks*2+ct)*4 + hf*2, 2)}, v{t[ct]} offset:{ks*2048 + hf*512}")
        return out

    def common_addr(g, isB):
        e = g.e; R = g.R; n, hh, G, i16 = g.n, g.hh, g.G, g.i16
        t, u = R.get(), R.get()
        g.tau = R.get()
        e(f"""v_bfe_u32 v{t}, v{n}, 2, 1
        v_lshlrev_b32 v{g.tau}, 4, v{t}
        v_and_b32 v{t}, 1, v{n}
        v_lshl_or_b32 v{g.tau}, v{t}, 3, v{g.tau}
        v_lshrrev_b32 v{t}, 3, v{n}
        v_lshl_or_b32 v{g.tau}, v{t}, 1, v{g.tau}
        v_bfe_u32 v{t}, v{n}, 1, 1
        v_or_b32 v{g.tau}, v{g.tau}, v{t}""")
        def kaddr(dst, row):
            e(f"""v_bfe_u32 v{t}, v{row}, 1, 3
            v_xor_b32 v{t}, v{t}, v{hh}
            v_lshlrev_b32 v{t}, 4, v{t}
            v_lshl_add_u32 v{dst}, v{row}, 7, v{t}""")
        g.xa = [R.get() for _ in range(4)]
        kaddr(g.xa[0], g.tau)
        e(f"s_lshl_b32 s38, s{sW}, 12\nv_add_u32 v{g.xa[0]}, s38, v{g.xa[0]}")
        for ks in range(1, 4): e(f"v_xor_b32 v{g.xa[ks]}, {ks<<5}, v{g.xa[0]}")
        g.cbase = R.get(); kaddr(g.cbase, n)
        g.sig = R.get()
        e(f"""v_and_b32 v{g.sig}, 0x13, v{n}
        v_bfe_u32 v{t}, v{n}, 2, 1
        v_lshl_or_b32 v{g.sig}, v{t}, 3, v{g.sig}
        v_bfe_u32 v{t}, v{n}, 3, 1
        v_lshl_or_b32 v{g.sig}, v{t}, 2, v{g.sig}""")
        g.trbase = R.get(); g.r4 = R.get(); g.c4 = R.get(); g.c4s = R.get()
        e(f"""v_lshrrev_b32 v{g.r4}, 2, v{i16}
        v_and_b32 v{g.c4}, 3, v0
        v_lshrrev_b32 v{t}, 1, v{g.c4}
        v_and_b32 v{u}, 1, v{g.c4}
        v_lshl_or_b32 v{g.c4s}, v{u}, 1, v{t}""")
        def traddr(dst, c4):
            e(f"""v_and_b32 v{t}, 1, v{G}
            v_lshlrev_b32 v{t}, 5, v{t}
            v_lshl_add_u32 v{t}, v{c4}, 3, v{t}
            v_lshrrev_b32 v{u}, 1, v{g.r4}
            v_lshlrev_b32 v{u}, 6, v{u}
            v_xor_b32 v{t}, v{t}, v{u}
            v_lshl_add_u32 v{u}, v{hh}, 3, v{g.r4}
            v_lshl_add_u32 v{dst}, v{u}, 7, v{t}""")
        traddr(g.trbase, g.c4)
        g.wa = [R.get() for _ in range(4)]
        if isB:
            kaddr(g.wa[0], g.sig)
            for ks in range(1, 4): e(f"v_xor_b32 v{g.wa[ks]}, {ks<<5}, v{g.wa[0]}")
        else:
            e(f"v_mov_b32 v{g.wa[0]}, v{g.trbase}\nv_xor_b32 v{g.wa[1]}, 64, v{g.trbase}")
            traddr(g.wa[2], g.c4s)
            e(f"v_xor_b32 v{g.wa[3]}, 64, v{g.wa[2]}")
        g.ga = R.get()
        e(f"""v_bfe_u32 v{t}, v{i16}, 2, 1
        v_and_b32 v{u}, 1, v{G}
        v_cmp_eq_u32 vcc, v{t}, v{u}
        s_lshl_b32 s38, s{sKB0}, 7
        s_add_u32 s38, s38, {GT}
        v_lshlrev_b32 v{t}, 4, v{hh}
        v_add_u32 v{t}, s38, v{t}
        v_mov_b32 v{u}, {GZ}
        v_cndmask_b32 v{g.ga}, v{u}, v{t}, vcc""")
        z = R.get(2)
        e(f"""v_mov_b32 v{z}, 0
        v_mov_b32 v{z+1}, 0
        s_lshl_b32 s38, s{sW}, 9
        s_add_u32 s38, s38, {MISC+2048}
        v_lshlrev_b32 v{t}, 3, v0
        v_add_u32 v{t}, s38, v{t}
        ds_write_b64 v{t}, {v(z,2)}""")
        R.put(z, 2)
        g.qa = R.get()
        e(f"""v_lshl_add_u32 v{u}, v{hh}, 3, v{g.r4}
        v_and_b32 v{t}, 1, v{G}
        v_lshlrev_b32 v{t}, 5, v{t}
        v_lshl_add_u32 v{t}, v{g.c4}, 3, v{t}
        v_lshl_add_u32 v{g.qa}, v{u}, 6, v{t}""")
        g.vo = R.get()
        e(f"v_lshl_add_u32 v{g.vo}, v{g.l3}, 10, v{g.ctr}")
        g.w2t = [R.get() for _ in range(4)]
        g.w2tok = {}; g.w2slot = {}
        R.put(t); R.put(u)

    def phase_k(g, isB, pre=None):
        e = g.e; R = g.R
        g.acc = [R.get(16) for _ in range(4)]
        g.gacc = R.get(4)
        wf = [[R.get(4) for _ in range(5)] for _ in range(2)]
        def reads(s):
            i, ks = s // 4, s % 4; st = (i % 2) * 32768; b = wf[s % 2]; out = []
            out.append(f"ds_read_b128 {a_(s*4,4)}, v{g.xa[ks]} offset:{st}")
            if isB:
                for q in range(4): out.append(f"ds_read_b128 {v(b[q],4)}, v{g.wa[ks]} offset:{st + 16384 + (q>>1)*8192 + (q&1)*4096}")
            else:
                for q in range(4):
                    for hf in range(2): out.append(f"ds_read_b64_tr_b16 {v(b[q]+2*hf,2)}, v{g.wa[q]} offset:{st + 16384 + (q>>1)*8192 + ks*2048 + hf*512}")
            out.append(f"ds_read_b128 {v(b[4],4)}, v{g.ga} offset:{i*128 + ks*32}")
            return out
        def mfmas(s):
            b = wf[s % 2]; x = a_(s*4, 4); out = []
            for q in range(4):
                c = v(g.acc[q], 16) if s else "0"
                if (not isB) and q < 2: out.append(f"{MF32} {v(g.acc[q],16)}, {v(b[q],4)}, {x}, {c}")
                else: out.append(f"{MF32} {v(g.acc[q],16)}, {x}, {v(b[q],4)}, {c}")
            out.append(f"{MF16} {v(g.gacc,4)}, {v(b[4],4)}, {x}, {v(g.gacc,4) if s else '0'}")
            return out
        def boundary(i):
            e.wait(vm=g.ktok[i], lg=e.lg_token() if i == 0 else None)
            e("s_barrier")
            nb = i + 2
            if i >= 1:
                if nb < 8: g.dma_kblock(nb, isB); g.ktok[nb] = e.vm_token()
                elif nb == 8: g.dma_wq(); g.qtok = e.vm_token()
                elif nb == 9: g.w2_issue(0, (4*SLOT, SLOT))
            if i in (2, 4, 6):
                for r in g.xa + g.wa: e(f"v_xor_b32 v{r}, 0x10000, v{r}")
        boundary(0)
        if pre: pre()
        e(reads(0))
        for s in range(32):
            if s + 1 < 32:
                if (s + 1) % 4 == 0: boundary((s + 1) // 4)
                rd = reads(s + 1)
            else: rd = []
            mm = mfmas(s)
            seq = []; k = 0; per = (len(rd) + 4) // 5
            for m in mm:
                seq += rd[k:k+per]; k += per; seq.append(m)
            seq += rd[k:]
            e(seq)
        for b in wf:
            for r in b: R.put(r, 4)
        for r in g.xa + g.wa + g.vx + g.vw + [g.ga]: R.put(r)

    def build(g):
        e = g.e
        g.prologue()
        base_st = e.fork(); base_R = g.R.copy()
        import copy
        saved = dict(g.__dict__)
        for isB in (0, 1):
            g.R = base_R.copy(); e.restore(base_st)
            if isB: e("gm_PATHB:")
            g.path(isB)
            e("s_endpgm") if not isB else None
        e("gm_END:"); e("s_endpgm")

    def path(g, isB):
        from gen_body import body
        body(g, isB)

def emit_file(path, opt):
    g = Gen(opt); g.build()
    lds = 163840
    s = f"; fused gated-mix kernel (generated by dev/gen.py)\n; @launch grid=(256,1,1) block=(256,1,1) lds={lds}\n"
    kn = NAME + "_kernel"
    s += f'.amdgcn_target "amdgcn-amd-amdhsa--gfx950"\n.text\n.globl {kn}\n.p2align 8\n.type {kn},@function\n{kn}:\n'
    s += "\n".join(g.e.lines) + "\n"
    s += (f'.section .rodata,"a"\n.p2align 6\n.amdhsa_kernel {kn}\n  .amdhsa_next_free_vgpr 512\n  .amdhsa_next_free_sgpr 102\n'
          f"  .amdhsa_accum_offset 256\n  .amdhsa_group_segment_fixed_size 0\n  .amdhsa_kernarg_size 136\n  .amdhsa_user_sgpr_count 2\n"
          f"  .amdhsa_user_sgpr_kernarg_segment_ptr 1\n  .amdhsa_system_sgpr_workgroup_id_x 1\n.end_amdhsa_kernel\n")
    open(path, "w").write(s)
    return g
```

```python
from gen import *
from emit import weave
OOB = 0x7FFF0000
FL_KV, FL_ST, FL_S2 = WS_FLAG, WS_FLAG + 32*128, WS_FLAG + 40*128
HXZ = 16 * SLOT; HXD = 16 * SLOT + 4096
SPIN_MAX = 100000

def pk(op, d, a, b, c=None, sel=None, neg=None):
    srcs = [a, b] + ([c] if c is not None else [])
    n = len(srcs); lo = [0]*n; hi = [1]*n
    for k, h in (sel or {}).items(): lo[k] = h; hi[k] = h
    f = lambda x: x if isinstance(x, str) else v(x, 2)
    s = f"v_pk_{op}_f32 {v(d,2)}, " + ", ".join(f(x) for x in srcs)
    if any(lo): s += " op_sel:[" + ",".join(map(str, lo)) + "]"
    if not all(hi): s += " op_sel_hi:[" + ",".join(map(str, hi)) + "]"
    if neg:
        m = ",".join("1" if k in neg else "0" for k in range(n)); s += f" neg_lo:[{m}] neg_hi:[{m}]"
    return s

def cfma(dr, di, ar, ai, br, bi, cr, ci, sel=None):
    s = {0: sel} if sel is not None else None
    return [pk("fma", dr, ar, br, cr, s), pk("fma", di, ar, bi, ci, s), pk("fma", dr, ai, bi, dr, s, [0]), pk("fma", di, ai, br, di, s)]

def softmax(g, p, out, tmp, usepk=True):
    m, m2, s = tmp, tmp + 1, tmp + 2
    L = [f"v_max3_f32 v{m}, v{p}, v{p+1}, v{p+2}", f"v_max3_f32 v{m2}, v{p+3}, v{p+4}, v{p+5}",
         f"v_max3_f32 v{m}, v{m}, v{p+6}, v{p+7}", f"v_max3_f32 v{m2}, v{m2}, v{p+8}, v{p+9}",
         f"v_max3_f32 v{m}, v{m}, v{p+10}, v{p+11}", f"v_max3_f32 v{m2}, v{m2}, v{p+12}, v{p+13}",
         f"v_max3_f32 v{m}, v{m}, v{p+14}, v{p+15}", f"v_max_f32 v{m}, v{m}, v{m2}",
         f"v_mul_f32 v{m}, {0xBFB8AA3B}, v{m}"]
    if usepk:
        for i in range(8): L.append(pk("fma", p+2*i, p+2*i, f"s[{sL}:{sL+1}]", m, {2: 0}))
    else:
        for i in range(16): L.append(f"v_fma_f32 v{p+i}, v{p+i}, s{sL}, v{m}")
    for i in range(16): L.append(f"v_exp_f32 v{p+i}, v{p+i}")
    if usepk:
        L += [pk("add", s, p, p+2), pk("add", m, p+4, p+6), pk("add", s, s, p+8), pk("add", m, m, p+10),
              pk("add", s, s, p+12), pk("add", m, m, p+14), pk("add", s, s, m), f"v_add_f32 v{s}, v{s}, v{s+1}"]
    else:
        L += [f"v_add_f32 v{tmp+k}, v{p+k}, v{p+4+k}" for k in range(4)]
        for j in (8, 12): L += [f"v_add_f32 v{tmp+k}, v{tmp+k}, v{p+j+k}" for k in range(4)]
        L += [f"v_add_f32 v{tmp}, v{tmp}, v{tmp+1}", f"v_add_f32 v{s}, v{s}, v{s+1}", f"v_add_f32 v{s}, v{s}, v{tmp}"]
    L.append(f"v_rcp_f32 v{s}, v{s}")
    if usepk:
        for i in range(8): L += [pk("mul", p+2*i, p+2*i, s, None, {1: 0})]
    else:
        for i in range(16): L.append(f"v_mul_f32 v{p+i}, v{p+i}, v{s}")
    for i in range(8): L.append(f"v_cvt_pk_bf16_f32 v{out+i}, v{p+2*i}, v{p+2*i+1}")
    return L

def cvt8(dst, src, n=4, neg=False):
    sg = "-" if neg else ""
    return [f"v_cvt_pk_bf16_f32 v{dst+i}, {sg}v{src+2*i}, {sg}v{src+2*i+1}" for i in range(n)]

def poll(g, soff, voff, mask=None):
    e = g.e; t = g.R.get(); L = e.label("poll"); D = e.label("pd")
    e(f"s_mov_b32 s{sSPIN}, 0"); e.settle()
    e(f"{L}:")
    e(f"buffer_load_dword v{t}, v{voff}, {srd(SWS)}, s{soff} offen sc1")
    e.drain(lg=False)
    e(f"v_cmp_ne_u32 vcc, s{sTAG}, v{t}")
    e(f"s_and_b64 vcc, vcc, {mask if mask else 'exec'}")
    e(f"s_cbranch_scc0 {D}\ns_add_u32 s{sSPIN}, s{sSPIN}, 1\ns_cmp_lt_u32 s{sSPIN}, {SPIN_MAX}\ns_cbranch_scc1 {L}\n{D}:")
    g.R.put(t)

def flag(g, soff, tok):
    e = g.e
    e.wait(vm=tok)
    e(f"buffer_store_dword v{g.vtag}, v{g.vflag}, {srd(SWS)}, s{soff} offen sc1")

def gate(g):
    e = g.e; R = g.R; d = g.gacc; g.gb = R.get(); g.sb = R.get(); t = R.get()
    L = [f"v_cvt_pk_bf16_f32 v{d}, v{d}, v{d}", f"v_and_b32 v{d}, 0xffff0000, v{d}", f"v_mul_f32 v{d}, {0xBFB8AA3B}, v{d}",
         f"v_exp_f32 v{d}, v{d}", f"v_add_f32 v{d}, 1.0, v{d}", f"v_rcp_f32 v{d}, v{d}", f"v_cvt_pk_bf16_f32 v{d}, v{d}, v{d}",
         f"v_and_b32 v{g.gb}, 0xffff0000, v{d}", f"v_sub_f32 v{d}, 1.0, v{g.gb}", f"v_cvt_pk_bf16_f32 v{d}, v{d}, v{d}",
         f"v_and_b32 v{g.sb}, 0xffff0000, v{d}",
         f"v_lshlrev_b32 v{t}, 2, v{g.n}",
         f"s_lshl_b32 s38, s{sTB}, 4", f"s_lshl_b32 s39, s{sISB}, 3", f"s_add_u32 s38, s38, s39", f"s_add_u32 s38, s38, s{sGRP}",
         f"s_lshl_b32 s38, s38, 9", f"s_lshl_b32 s39, s{sW}, 7", f"s_add_u32 s38, s38, s39", f"s_add_u32 s38, s38, {WS_SB}",
         f"buffer_store_dword v{g.sb}, v{t}, {srd(SWS)}, s38 offen sc1", lambda: R.put(t)]
    return L

def pre_common(g, isB):
    e = g.e; R = g.R
    e(f"v_readfirstlane_b32 s{sTAG}, v{g.vtag}\ns_mul_i32 s{sTAG}, s{sTAG}, 0x9E3779B1\ns_add_u32 s{sTAG}, s{sTAG}, 0x7F4A7C15")
    e(f"v_mov_b32 v{g.vtag}, s{sTAG}")
    t, u = R.get(), R.get()
    g.vflag = R.get()
    e(f"v_cmp_eq_u32 vcc, 0, v0\nv_mov_b32 v{t}, {OOB}\nv_cndmask_b32 v{g.vflag}, v{t}, 0, vcc".replace(f"v_cndmask_b32 v{g.vflag}, v{t}, 0, vcc", f"v_cndmask_b32 v{g.vflag}, v{t}, v0, vcc"))
    heads = [2, 3] if isB else [0, 1, 2, 3]
    g.wp = {h: R.get(4) for h in heads}
    e(f"""v_lshl_add_u32 v{t}, v{g.hh}, 2, v{g.r4}
    v_lshlrev_b32 v{t}, 5, v{t}
    v_and_b32 v{u}, 1, v{g.G}
    v_lshl_add_u32 v{t}, v{u}, 4, v{t}
    v_lshrrev_b32 v{u}, 1, v{g.c4}
    v_lshl_add_u32 v{t}, v{u}, 3, v{t}
    v_add_u32 v{t}, {WP}, v{t}""")
    for h in heads:
        for hf in range(2): e(f"ds_read_b64_tr_b16 {v(g.wp[h]+2*hf,2)}, v{t} offset:{h*512 + hf*256}")
    e(f"v_bfe_u32 v{u}, v{g.n}, 2, 1\nv_mul_u32_u24 v{u}, 0x8000, v{u}\nv_lshl_or_b32 v{u}, v{u}, 16, v{u}")
    for h in heads:
        for k in range(4): e(f"v_xor_b32 v{g.wp[h]+k}, v{g.wp[h]+k}, v{u}")
    g.sumA = R.get(4)
    e(f"""v_and_b32 v{t}, 1, v0
    v_lshlrev_b32 v{t}, 4, v{t}
    v_lshlrev_b32 v{t}, v{t}, 0x3f80""".replace("v_lshlrev_b32 v%d, v%d, 0x3f80" % (t, t), f"v_mov_b32 v{u}, 0x3f80\nv_lshlrev_b32 v{t}, v{t}, v{u}"))
    e(f"""v_lshrrev_b32 v{u}, 3, v0
    v_xor_b32 v{u}, v{u}, v{g.G}
    v_and_b32 v{u}, 1, v{u}
    v_lshlrev_b32 v{u}, 2, v{u}
    v_bfe_u32 v{g.sumA}, v0, 1, 2
    v_or_b32 v{u}, v{u}, v{g.sumA}""")
    for k in range(4): e(f"v_cmp_eq_u32 vcc, {k}, v{u}\nv_cndmask_b32 v{g.sumA+k}, 0, v{t}, vcc")
    R.put(t); R.put(u)

def ssm_params(g):
    e = g.e; R = g.R
    names = ['a1', 'a8', 'a16', 'aown', 'a128', 'a1024', 'cf']
    g.pr = {k: (R.get(2), R.get(2)) for k in names}
    er, rv, mg, f, c, nn = [R.get() for _ in range(6)]
    e(f"s_lshl_b32 s38, s{sW}, 5\nv_lshl_add_u32 v{nn}, v{g.hh}, 4, s38\nv_cvt_f32_u32 v{nn}, v{nn}")
    for t in range(2):
        lre, lim, ldt = g.praw[t]
        e(f"""v_lshlrev_b32 v{lre}, 16, v{lre}
        v_lshlrev_b32 v{lim}, 16, v{lim}
        v_lshlrev_b32 v{ldt}, 16, v{ldt}
        v_mul_f32 v{ldt}, {LOG2E}, v{ldt}
        v_exp_f32 v{ldt}, v{ldt}
        v_cvt_pk_bf16_f32 v{ldt}, v{ldt}, v{ldt}
        v_and_b32 v{ldt}, 0xffff0000, v{ldt}
        v_mul_f32 v{er}, v{ldt}, v{lre}
        v_mul_f32 v{er}, {LOG2E}, v{er}
        v_mul_f32 v{rv}, v{ldt}, v{lim}
        v_mul_f32 v{rv}, 0x3E22F983, v{rv}""")
        for k, mult in (('a1', '1.0'), ('a8', 0x41000000), ('a16', 0x41800000), ('aown', f"v{nn}"), ('a128', 0x43000000), ('a1024', 0x44800000)):
            dr, di = g.pr[k][0] + t, g.pr[k][1] + t
            e(f"""v_mul_f32 v{mg}, {mult}, v{er}
            v_mul_f32 v{f}, {mult}, v{rv}
            v_exp_f32 v{mg}, v{mg}
            v_rndne_f32 v{c}, v{f}
            v_sub_f32 v{f}, v{f}, v{c}
            v_cos_f32 v{c}, v{f}
            v_sin_f32 v{f}, v{f}
            v_mul_f32 v{dr}, v{mg}, v{c}
            v_mul_f32 v{di}, v{mg}, v{f}""")
        ar, ai = g.pr['a1'][0] + t, g.pr['a1'][1] + t; cr, ci = g.pr['cf'][0] + t, g.pr['cf'][1] + t
        e(f"""v_add_f32 v{mg}, -1.0, v{ar}
        v_mul_f32 v{f}, v{lre}, v{lre}
        v_fmac_f32 v{f}, v{lim}, v{lim}
        v_rcp_f32 v{f}, v{f}
        v_mul_f32 v{cr}, v{mg}, v{lre}
        v_fmac_f32 v{cr}, v{ai}, v{lim}
        v_mul_f32 v{ci}, v{ai}, v{lre}
        v_fma_f32 v{ci}, -v{mg}, v{lim}, v{ci}
        v_mul_f32 v{cr}, v{cr}, v{f}
        v_mul_f32 v{ci}, v{ci}, v{f}""")
        for r in g.praw[t]: R.put(r)
    ar, ai = g.pr['aown']; cr, ci = g.pr['cf']; tr = R.get(2)
    e([pk("mul", tr, ar, ci), pk("mul", ar, ar, cr), pk("fma", ar, ai, ci, ar, None, [0]), pk("fma", ai, ai, cr, tr)])
    R.put(tr, 2)
    for r in (er, rv, mg, f, c, nn): R.put(r)
    z = R.get(4); t = R.get()
    e([f"v_mov_b32 v{z+k}, 0" for k in range(4)])
    e(f"s_lshl_b32 s38, s{sW}, 10\ns_add_u32 s38, s38, {HXZ}\nv_add_u32 v{t}, s38, v{g.l16}\nds_write_b128 v{t}, {v(z,4)}")
    R.put(z, 4); R.put(t)

def q_gemm(g):
    R = g.R; g.qacc = R.get(16); D = 3
    g.qf = [R.get(4) for _ in range(D + 1)]
    rd = lambda s: [f"ds_read_b64_tr_b16 {v(g.qf[s % (D+1)]+2*hf,2)}, v{g.qa} offset:{s*1024 + hf*256}" for hf in range(2)]
    pro = [x for s in range(D) for x in rd(s)]
    groups = []
    for s in range(32):
        gr = [f"{MF32} {v(g.qacc,16)}, {v(g.qf[s % (D+1)],4)}, {a_(s*4,4)}, {v(g.qacc,16) if s else '0'}"]
        if s + D < 32: gr += rd(s + D)
        groups.append(gr)
    return pro, groups

def q_phi(g, isB):
    e = g.e; R = g.R
    for r in g.qf: R.put(r, 4)
    h0 = 2 if isB else 0
    bf = R.get(8); p = [R.get(16), R.get(16)]; tmp = R.get(4)
    e(cvt8(bf, g.qacc, 8))
    for k in range(2): e(f"{MF32} {v(p[k],16)}, {v(g.wp[h0+k],4)}, {v(bf+4*k,4)}, 0")
    R.put(g.qacc, 16)
    g.phq = [bf, R.get(8)]
    g.dump('pq', [p[0]+i for i in range(16)] + [p[1]+i for i in range(16)], isB)
    L0 = softmax(g, p[0], g.phq[0], tmp); L1 = softmax(g, p[1], g.phq[1], tmp)
    return L0 + L1 + [lambda: (R.put(p[0], 16), R.put(p[1], 16), R.put(tmp, 4))]

def kv_total_and_o(g, isB):
    e = g.e; R = g.R
    t, u, vz, vk = [R.get() for _ in range(4)]
    e(f"""s_lshl_b32 s{sT1}, s{sGRP}, 2
    s_lshr_b32 s38, s{sW}, 1
    s_add_u32 s{sT1}, s{sT1}, s38
    s_add_u32 s{sT1}, s{sT1}, {2*isB}
    s_lshl_b32 s{sT2}, s{sT1}, 7
    s_add_u32 s{sT2}, s{sT2}, {FL_KV}
    v_lshlrev_b32 v{t}, 2, v{g.i16}
    v_lshlrev_b32 v{vk}, 10, v{g.hh}
    v_and_b32 v{u}, 1, v{g.G}
    v_lshl_add_u32 v{vk}, v{u}, 8, v{vk}
    v_lshl_add_u32 v{vk}, v{g.i16}, 4, v{vk}
    v_and_b32 v{vz}, 7, v0
    v_lshlrev_b32 v{vz}, 7, v{vz}
    v_lshl_add_u32 v{vz}, v{g.hh}, 6, v{vz}
    v_lshl_add_u32 v{vz}, v{u}, 4, v{vz}
    v_bfe_u32 v{u}, v0, 3, 1
    v_lshl_add_u32 v{vz}, v{u}, 5, v{vz}""")
    poll(g, sT2, t)
    g.stamp(5)
    ld = [R.get(4) for _ in range(9)]
    e(f"""s_lshl_b32 s38, s{sT1}, 14
    s_and_b32 s39, s{sW}, 1
    s_lshl_b32 s39, s39, 9
    s_add_u32 s38, s38, s39
    s_add_u32 s38, s38, {WS_KV}
    s_lshl_b32 s39, s{sT1}, 10
    s_add_u32 s39, s39, {WS_Z}""")
    e(f"buffer_load_dwordx4 {v(ld[8],4)}, v{vz}, {srd(SWS)}, s39 offen sc1")
    for i in range(8):
        e(f"buffer_load_dwordx4 {v(ld[i],4)}, v{vk}, {srd(SWS)}, s38 offen offset:{(i&1)*2048} sc1")
        if i & 1: e("s_add_u32 s38, s38, 4096")
    wk, wz = vk, vz
    dk = R.get(4); dz = R.get(4)
    wk2, wz2 = R.get(), R.get()
    e(f"""s_lshr_b32 s38, s{sW}, 1
    s_mul_i32 s38, s38, 1088
    s_add_u32 s38, s38, {KVT}
    s_and_b32 s39, s{sW}, 1
    s_lshl_b32 s39, s39, 9
    s_add_u32 s39, s39, s38
    v_lshlrev_b32 v{wk2}, 8, v{g.hh}
    v_lshl_add_u32 v{wk2}, v{g.i16}, 4, v{wk2}
    v_and_b32 v{t}, 1, v{g.G}
    v_lshl_add_u32 v{wk2}, v{t}, 3, v{wk2}
    v_add_u32 v{wk2}, s39, v{wk2}
    v_bfe_u32 v{t}, v0, 3, 1
    v_lshlrev_b32 v{t}, 5, v{t}
    v_lshl_add_u32 v{wz2}, v{g.G}, 3, v{t}
    s_add_u32 s38, s38, 1024
    v_add_u32 v{wz2}, s38, v{wz2}""")
    ra = [R.get(), R.get()]
    e(f"""v_lshlrev_b32 v{t}, 9, v{g.hh}
    v_lshl_add_u32 v{t}, v{g.n}, 4, v{t}
    v_lshlrev_b32 v{u}, 5, v{g.hh}
    v_add_u32 v{u}, 1024, v{u}
    v_cmp_gt_u32 vcc, 16, v{g.n}
    v_cndmask_b32 v{ra[0]}, v{u}, v{t}, vcc
    v_mov_b32 v{t}, 256
    v_cndmask_b32 v{t}, 16, v{t}, vcc
    v_add_u32 v{ra[0]}, {KVT}, v{ra[0]}
    v_add_u32 v{ra[1]}, v{ra[0]}, v{t}""")
    e(f"{MF16} {v(dz,4)}, {v(g.sumA,4)}, {v(ld[8],4)}, 0")
    for i in range(8): e(f"{MF16} {v(dk,4)}, {v(g.sumA,4)}, {v(ld[i],4)}, {v(dk,4) if i else '0'}")
    for ctl in ("quad_perm:[1,0,3,2]", "quad_perm:[2,3,0,1]", "row_half_mirror"):
        for k in range(4): e(f"v_add_f32 v{dz+k}, v{dz+k}, v{dz+k} {ctl} row_mask:0xf bank_mask:0xf")
    e(cvt8(dz, dz, 2)); e(f"ds_write_b64 v{wz2}, {v(dz,2)}")
    e(cvt8(dk, dk, 2)); e(f"ds_write_b64 v{wk2}, {v(dk,2)}")
    e.wait(lg=e.lg_token()); e("s_barrier")
    af = ld[:4]
    for hq in range(2):
        for ab in range(2): e(f"ds_read_b128 {v(af[hq*2+ab],4)}, v{ra[ab]} offset:{hq*1088}")
    do = [R.get(16), R.get(16)]
    for hq in range(2):
        for ab in range(2): e(f"{MF32} {v(do[hq],16)}, {v(af[hq*2+ab],4)}, {v(g.phq[hq]+4*ab,4)}, {v(do[hq],16) if ab else '0'}")
    e(f"""s_lshl_b32 s38, s{sTB}, 2
    s_add_u32 s38, s38, s{sW}
    s_mul_i32 s38, s38, 98304
    s_lshl_b32 s39, s{sGRP}, 12
    s_add_u32 s38, s38, s39
    s_add_u32 s38, s38, {WS_A2 + (64 + 2*isB)*1024}""")
    for hq in range(2):
        d = do[hq]
        e(f"v_add_f32 v{d+8}, 0x358637BD, v{d+8}\nv_rcp_f32 v{d+8}, v{d+8}\nv_mul_f32 v{d+8}, v{d+8}, v{g.gb}")
        e([pk("mul", d+2*k, d+2*k, d+8, None, {1: 0}) for k in range(4)])
        e(cvt8(d+12, d, 4))
        e(f"buffer_store_dwordx4 {v(d+12,4)}, v{g.l16}, {srd(SWS)}, s38 offen offset:{hq*1024} sc1")
    for r in ld + [dk, dz]: R.put(r, 4)
    for r in do: R.put(r, 16)
    for r in g.phq: R.put(r, 8)
    for r in [t, u, vz, vk, wk2, wz2] + ra: R.put(r)
    for h in g.wp.values(): R.put(h, 4)
    R.put(g.sumA, 4)

def s2_flag(g, isB):
    e = g.e
    e(f"""s_lshl_b32 s38, s{sTB}, 1
    s_lshr_b32 s39, s{sW}, 1
    s_add_u32 s38, s38, s39
    s_lshl_b32 s38, s38, 7
    s_lshl_b32 s39, s{sGRP}, 3
    s_add_u32 s38, s38, s39
    s_and_b32 s39, s{sW}, 1
    s_lshl_b32 s39, s39, 2
    s_add_u32 s38, s38, s39
    s_add_u32 s38, s38, {FL_S2 + isB*64}""")
    flag(g, 38, e.vm_token())

def gemm2(g, isB, pending_w2):
    e = g.e; R = g.R
    t, u, tl = R.get(), R.get(), R.get()
    xq = [R.get(2) for _ in range(4)]; dsk = R.get(2); sbv = [R.get() for _ in range(4)]
    g.mksrd(STMP, 'dskip')
    e(f"""v_and_b32 v{t}, 1, v{g.G}
    v_lshlrev_b32 v{t}, 3, v{t}
    v_or_b32 v{tl}, v{t}, v{g.hh}
    v_lshlrev_b32 v{u}, 3, v{g.i16}
    v_lshl_add_u32 v{t}, v{tl}, 10, v{u}
    s_lshr_b32 s38, s{sW}, 1
    s_lshl_b32 s38, s38, 5
    s_and_b32 s39, s{sW}, 1
    s_lshl_b32 s39, s39, 2
    s_add_u32 s38, s38, s39
    s_add_u32 s{sT3}, s38, s{sTK0}
    s_lshl_b32 s38, s{sT3}, 10
    s_lshl_b32 s39, s{sN0}, 1
    s_add_u32 s38, s38, s39""")
    e(f"buffer_load_dwordx2 {v(dsk,2)}, v{u}, {srd(STMP)}, s39 offen")
    for i in range(4):
        ci = 16*(i&1) + 2*(i>>1)
        e(f"s_add_u32 s39, s38, {ci*1024}\nbuffer_load_dwordx2 {v(xq[i],2)}, v{t}, {srd(SX)}, s39 offen")
    for L in pending_w2: e(L)
    e(f"""s_lshr_b32 s38, s{sTK0}, 6
    s_lshl_b32 s38, s38, 7
    s_add_u32 s{sT2}, s38, {FL_S2}
    s_lshl_b32 s38, s{sW}, 2
    s_lshl_b32 s{sM0}, 0x000f000f, s38
    s_mov_b32 s{sM0+1}, 0
    v_lshlrev_b32 v{u}, 2, v{g.n}""")
    poll(g, sT2, u, f"s[{sM0}:{sM0+1}]")
    g.stamp(8)
    e(f"""s_lshr_b32 s38, s{sTK0}, 5
    s_mul_i32 s38, s38, 98304
    s_add_u32 s38, s38, {WS_A2}
    s_lshl_b32 s39, s{sW}, 14
    s_add_u32 s{sT0}, s38, s39
    s_lshl_b32 s39, s{sW}, 13
    s_add_u32 s{sT1}, s38, s39
    s_add_u32 s{sT1}, s{sT1}, 65536""")
    NB = 32
    buf = [R.get(4) for _ in range(NB)]
    steps = [(j, tt) for j in range(24) for tt in range(2)]
    def ld(k):
        j, tt = steps[k]
        base, jj = (sT0, j) if j < 16 else (sT1, j - 16)
        return [f"s_add_u32 s39, s{base}, {tt*98304 + (jj>>2)*4096}",
                f"buffer_load_dwordx4 {v(buf[k % NB],4)}, v{g.l16}, {srd(SWS)}, s39 offen offset:{(jj&3)*1024} sc1"]
    for k in range(NB): e(ld(k))
    e(f"""s_lshr_b32 s38, s{sTK0}, 7
    s_lshl_b32 s38, s38, 4
    s_lshl_b32 s39, s{sW}, 1
    s_add_u32 s38, s38, s39
    s_add_u32 s38, s38, 8
    s_lshl_b32 s38, s38, 9
    s_and_b32 s39, s{sTK0}, 64
    s_lshl_b32 s39, s39, 2
    s_add_u32 s38, s38, s39
    s_lshl_b32 s39, s{sW}, 6
    s_add_u32 s38, s38, s39
    s_add_u32 s38, s38, {WS_SB}
    v_lshlrev_b32 v{u}, 2, v{g.G}""")
    for i in range(4): e(f"buffer_load_dword v{sbv[i]}, v{u}, {srd(SWS)}, s38 offen offset:{i*16} sc1")
    acc = [R.get(16) for _ in range(4)]
    for k, (j, tt) in enumerate(steps):
        un, ks = ((j>>3)*2 + ((j>>2)&1), j & 3) if j < 16 else (4 + ((j-16)>>2), j & 3)
        for ct in range(2):
            A = g.w2_acc(un) + (ks*2+ct)*4; d = v(acc[ct*2+tt], 16)
            e(f"{MF32} {d}, {a_(A,4)}, {v(buf[k % NB],4)}, {d if j else '0'}")
        if k + NB < len(steps): e(ld(k + NB))
        if k == 40:
            term = buf[20:24]; df = buf[24]
            e(f"v_lshlrev_b32 v{df}, 16, v{dsk}\nv_and_b32 v{df+1}, 0xffff0000, v{dsk}\nv_lshlrev_b32 v{df+2}, 16, v{dsk+1}\nv_and_b32 v{df+3}, 0xffff0000, v{dsk+1}")
            for i in range(4):
                T = term[i]; x = xq[i]
                e(f"v_lshlrev_b32 v{T}, 16, v{x}\nv_and_b32 v{T+1}, 0xffff0000, v{x}\nv_lshlrev_b32 v{T+2}, 16, v{x+1}\nv_and_b32 v{T+3}, 0xffff0000, v{x+1}")
                e([f"v_mul_f32 v{T+c}, v{T+c}, v{df+c}" for c in range(4)])
                e(f"v_cvt_pk_bf16_f32 v{x}, v{T}, v{T+1}\nv_cvt_pk_bf16_f32 v{x+1}, v{T+2}, v{T+3}")
                e(f"v_lshlrev_b32 v{T}, 16, v{x}\nv_and_b32 v{T+1}, 0xffff0000, v{x}\nv_lshlrev_b32 v{T+2}, 16, v{x+1}\nv_and_b32 v{T+3}, 0xffff0000, v{x+1}")
                e([f"v_mul_f32 v{T+c}, v{T+c}, v{sbv[i]}" for c in range(4)])
    g.stamp(9)
    wa = [buf[0] + k for k in range(4)]; ra = [buf[1], buf[1] + 1]; so = buf[1] + 2
    e(f"""v_and_b32 v{t}, 7, v{g.n}
    v_xor_b32 v{t}, v{t}, v{g.hh}
    v_lshlrev_b32 v{t}, 4, v{t}
    v_lshl_add_u32 v{t}, v{g.n}, 8, v{t}
    s_lshl_b32 s38, s{sW}, 14
    s_add_u32 s38, s38, {RED}
    v_add_u32 v{wa[0]}, s38, v{t}""")
    for q in range(1, 4): e(f"v_xor_b32 v{wa[q]}, {q<<5}, v{wa[0]}")
    e(f"""v_xor_b32 v{t}, v{g.i16}, v{g.G}
    v_lshlrev_b32 v{t}, 4, v{t}
    v_lshl_add_u32 v{t}, v{g.G}, 8, v{t}
    s_lshl_b32 s38, s{sW}, 12
    s_add_u32 s38, s38, {RED}
    v_add_u32 v{ra[0]}, s38, v{t}
    v_xor_b32 v{ra[1]}, 64, v{ra[0]}
    v_lshlrev_b32 v{t}, 4, v{g.i16}
    v_lshl_add_u32 v{so}, v{tl}, 11, v{t}
    s_lshl_b32 s38, s{sT3}, 11
    s_lshl_b32 s39, s{sN0}, 2
    s_add_u32 s38, s38, s39""")
    for tt in range(2):
        for ct in range(2):
            for q in range(4): e(f"ds_write_b128 v{wa[q]}, {v(acc[ct*2+tt]+4*q,4)} offset:{tt*8192 + ct*128}")
    e.wait(lg=e.lg_token()); e("s_barrier")
    rb = buf[2:18]
    for i in range(4):
        for src in range(4): e(f"ds_read_b128 {v(rb[i*4+src],4)}, v{ra[i&1]} offset:{src*16384 + i*1024}")
    for i in range(4):
        T = term[i]
        for src in range(4): e([pk("add", T, T, rb[i*4+src]), pk("add", T+2, T+2, rb[i*4+src]+2)])
        ci = 16*(i&1) + 2*(i>>1)
        e(f"s_add_u32 s39, s38, {ci*2048}\nbuffer_store_dwordx4 {v(T,4)}, v{so}, {srd(SOUT)}, s39 offen")
    e(f"""s_add_u32 s38, s{sTK0}, s{sN0}
    s_add_u32 s38, s38, s{sW}
    s_cmp_eq_u32 s{sN0}, 0
    s_cselect_b32 s38, s38, 0
    s_cmp_eq_u32 s38, 1920
    s_cselect_b32 s38, {WS_EPOCH}, {OOB}
    buffer_store_dword v{g.vtag}, v{g.vflag}, {srd(SWS)}, s38 offen sc1""")
    if g.o.get('time'):
        g.stamp(10)
        e.drain(); g.stamp(11)
        e(f"s_lshl_b32 s38, s2, 2\ns_add_u32 s38, s38, s{sW}\ns_lshl_b32 s38, s38, 6\ns_add_u32 s38, s38, {WS_TIME}")
        for i in range(12):
            e(f"s_sub_u32 s39, s{4+2*i}, s100\nv_mov_b32 v{t}, s39\nbuffer_store_dword v{t}, v{g.vflag}, {srd(SWS)}, s38 offen offset:{4*i}")
        e(f"v_mov_b32 v{t}, s100\nbuffer_store_dword v{t}, v{g.vflag}, {srd(SWS)}, s38 offen offset:48")

def body(g, isB):
    e = g.e; R = g.R
    g.vw = [R.get(), R.get()]
    g.mksrd(SWS, 'ws')
    g.vtag = R.get()
    e(f"v_mov_b32 v{g.vtag}, 0\nbuffer_load_dword v{g.vtag}, v{g.vtag}, {srd(SWS)}, 0 offen offset:{WS_EPOCH} sc1")
    if isB:
        g.mksrd(SB0, 'bre'); g.mksrd(SB1, 'bim')
        e(f"""s_lshl_b32 s38, s{sW}, 14
        v_add_u32 v{g.vw[0]}, s38, v{g.vc[0]}
        s_add_u32 s38, s38, {8192-1024}
        v_add_u32 v{g.vw[1]}, s38, v{g.vc[1]}
        s_lshl_b32 s{sWO_}, s{sGRP}, 16""")
        t, u = R.get(), R.get()
        e(f"""v_and_b32 v{t}, 0x13, v{g.n}
        v_bfe_u32 v{u}, v{g.n}, 2, 1
        v_lshl_or_b32 v{t}, v{u}, 3, v{t}
        v_bfe_u32 v{u}, v{g.n}, 3, 1
        v_lshl_or_b32 v{t}, v{u}, 2, v{t}
        v_lshlrev_b32 v{t}, 1, v{t}
        s_lshl_b32 s38, s{sGRP}, 7""")
        g.praw = [[R.get() for _ in range(3)] for _ in range(2)]
        for k, nm in enumerate(('lre', 'lim', 'ldt')):
            g.mksrd(STMP, nm)
            for tt in range(2): e(f"buffer_load_ushort v{g.praw[tt][k]}, v{t}, {srd(STMP)}, s38 offen offset:{tt*64}")
        R.put(t); R.put(u)
    else:
        e(f"""s_lshl_b32 s38, s{sW}, 4
        v_add_u32 v{g.vw[0]}, s38, v{g.l3}
        v_mul_u32_u24 v{g.vw[0]}, 3072, v{g.vw[0]}
        v_add_u32 v{g.vw[0]}, v{g.vw[0]}, v{g.ctr}
        v_add_u32 v{g.vw[1]}, {8*3072-1024}, v{g.vw[0]}
        s_lshl_b32 s{sWO_}, s{sGRP}, 7
        s_add_u32 s{sWO_}, s{sWO_}, 1024""")
    g.ktok = {}
    for i in range(3): g.dma_kblock(i, isB); g.ktok[i] = e.vm_token()
    g.mksrd(SWO, 'wo'); g.mksrd(SCR, 'cre'); g.mksrd(SCI, 'cim'); g.mksrd(SOUT, 'out')
    g.common_addr(isB)
    def pre():
        g.stamp(0)
        pre_common(g, isB)
        if isB: ssm_params(g)
    g.phase_k(isB, pre)
    g.stamp(1)
    g.dump('acc', [a + i for a in g.acc for i in range(16)] + [g.gacc], isB)
    if isB: body_b(g)
    else: body_a(g)

Sa, Sb, Sc = (4*SLOT, SLOT), (8*SLOT, 2*SLOT), (9*SLOT, 2*SLOT)

def body_a(g):
    e = g.e; R = g.R; acc = g.acc
    kb = R.get(16); p = [R.get(16) for _ in range(4)]; tmp = R.get(4)
    e(cvt8(kb, acc[0], 8)); e(cvt8(kb + 8, acc[1], 8))
    for h in range(4): e(f"{MF32} {v(p[h],16)}, {v(g.wp[h],4)}, {v(kb+4*h,4)}, 0")
    R.put(acc[0], 16); R.put(acc[1], 16)
    pw0, pw1, vfw, t, u = [R.get() for _ in range(5)]
    e(f"""v_bfe_u32 v{t}, v{g.n}, 1, 2
    v_lshlrev_b32 v{u}, 1, v{g.hh}
    v_xor_b32 v{t}, v{t}, v{u}
    v_lshlrev_b32 v{t}, 4, v{t}
    v_lshl_add_u32 v{t}, v{g.n}, 6, v{t}
    s_lshl_b32 s38, s{sW}, 11
    s_add_u32 s38, s38, {PH}
    v_add_u32 v{pw0}, s38, v{t}
    v_xor_b32 v{pw1}, 16, v{pw0}
    s_mul_i32 s38, s{sW}, 4160
    s_add_u32 s38, s38, {VF}
    v_add_u32 v{vfw}, s38, v{g.l16}""")
    e("s_barrier")
    vb = R.get(16)
    e(cvt8(vb, acc[2], 8)); e(cvt8(vb + 8, acc[3], 8))
    for k in range(4): e(f"ds_write_b128 v{vfw}, {v(vb+4*k,4)} offset:{k*1040}")
    one = R.get(4)
    e([f"v_mov_b32 v{one+k}, 0x3f803f80" for k in range(4)])
    e(f"v_and_b32 v{t}, 3, v0\nv_mul_u32_u24 v{t}, 1040, v{t}\ns_add_u32 s38, s38, 1024\nv_add_u32 v{t}, s38, v{t}\nds_write_b128 v{t}, {v(one,4)}")
    R.put(one, 4); R.put(acc[2], 16); R.put(acc[3], 16)
    e(gate(g))
    g.dump('pk', [p[h]+i for h in range(4) for i in range(16)], 0)
    for h in range(4):
        o = vb + 8*(h & 1)
        e(softmax(g, p[h], o, tmp))
        e(f"ds_write_b128 v{pw0}, {v(o,4)} offset:{h*8192}\nds_write_b128 v{pw1}, {v(o+4,4)} offset:{h*8192}")
    g.stamp(2)
    pa, vfa = pw0, pw1
    e(f"""v_and_b32 v{t}, 1, v{g.G}
    v_lshlrev_b32 v{t}, 5, v{t}
    v_lshl_add_u32 v{t}, v{g.c4s}, 3, v{t}
    v_lshrrev_b32 v{u}, 1, v{g.r4}
    v_lshl_add_u32 v{u}, v{g.hh}, 1, v{u}
    v_lshlrev_b32 v{u}, 4, v{u}
    v_xor_b32 v{t}, v{t}, v{u}
    v_lshl_add_u32 v{u}, v{g.hh}, 2, v{g.r4}
    v_lshl_add_u32 v{t}, v{u}, 6, v{t}
    s_lshl_b32 s38, s{sW}, 13
    s_add_u32 s38, s38, {PH}""")
    pa = R.get(); vfa = R.get()
    e(f"""v_add_u32 v{pa}, s38, v{t}
    s_and_b32 s39, s{sW}, 1
    v_and_b32 v{t}, 1, v{g.G}
    v_cmp_eq_u32 s[{sM0}:{sM0+1}], s39, v{t}
    v_mov_b32 v{u}, 1024
    v_cndmask_b32 v{vfa}, v{u}, v{g.l16}, s[{sM0}:{sM0+1}]
    s_lshr_b32 s38, s{sW}, 1
    s_mul_i32 s38, s38, 2080
    s_add_u32 s38, s38, {VF}
    v_add_u32 v{vfa}, s38, v{vfa}""")
    k0, k1 = R.get(), R.get()
    e(f"""s_lshl_b32 s38, s{sGRP}, 2
    s_add_u32 s38, s38, s{sW}
    s_lshl_b32 s{sT2}, s38, 7
    s_lshl_b32 s39, s{sTB}, 2
    s_add_u32 s{sT2}, s{sT2}, s39
    s_add_u32 s{sT2}, s{sT2}, {FL_KV}
    s_lshl_b32 s38, s38, 4
    s_add_u32 s38, s38, s{sTB}
    s_lshl_b32 s39, s38, 10
    s_add_u32 s39, s39, {WS_KV}
    s_lshl_b32 s38, s38, 6
    s_add_u32 s38, s38, {WS_Z}
    v_lshlrev_b32 v{t}, 8, v{g.hh}
    v_lshl_add_u32 v{t}, v{g.i16}, 4, v{t}
    v_add_u32 v{t}, s39, v{t}
    v_lshlrev_b32 v{u}, 4, v{g.hh}
    v_add_u32 v{u}, s38, v{u}
    v_cndmask_b32 v{k0}, v{u}, v{t}, s[{sM0}:{sM0+1}]
    v_add_u32 v{t}, 512, v{t}
    v_add_u32 v{u}, 32, v{u}
    v_cndmask_b32 v{k1}, v{u}, v{t}, s[{sM0}:{sM0+1}]""")
    e.wait(lg=e.lg_token()); e("s_barrier")
    fa = [p[0] + 4*k for k in range(4)] + [p[1] + 4*k for k in range(4)]
    fb = [p[2] + 4*k for k in range(4)] + [p[3] + 4*k for k in range(4)]
    for k in range(8):
        wsrc, s = k >> 1, k & 1
        for hf in range(2): e(f"ds_read_b64_tr_b16 {v(fa[k]+2*hf,2)}, v{pa} offset:{wsrc*2048 + s*1024 + hf*512}")
        e(f"ds_read_b128 {v(fb[k],4)}, v{vfa} offset:{wsrc*4160 + s*1040}")
    dkv = kb
    for k in range(8): e(f"{MF32} {v(dkv,16)}, {v(fa[k],4)}, {v(fb[k],4)}, {v(dkv,16) if k else '0'}")
    e(g.w2_read(0)[:]);
    e(cvt8(vb, dkv, 8))
    e(f"buffer_store_dwordx4 {v(vb,4)}, v{k0}, {srd(SWS)}, 0 offen sc1\nbuffer_store_dwordx4 {v(vb+4,4)}, v{k1}, {srd(SWS)}, 0 offen sc1")
    tok = e.vm_token()
    g.stamp(3)
    for r in p + [kb]: R.put(r, 16)
    for r in (pw0, pw1, vfw, t, u, pa, vfa, k0, k1): R.put(r)
    R.put(tmp, 4)
    e.wait(lg=e.lg_token())
    g.w2_issue(1, Sa)
    e.wait(vm=g.qtok); e("s_barrier")
    g.w2_issue(2, Sb); g.w2_issue(3, Sc)
    pro, groups = q_gemm(g)
    e(pro)
    e([x for gr in groups[:16] for x in gr])
    flag(g, sT2, tok)
    R.put(vb, 16)
    e([x for gr in groups[16:] for x in gr])
    g.dump('q', [g.qacc + i for i in range(16)], 0)
    e(q_phi(g, 0))
    g.stamp(4)
    e(g.w2_read(1)); e(g.w2_read(2)); e.wait(lg=e.lg_token())
    g.w2_issue(4, Sa); g.w2_issue(5, Sb)
    e(g.w2_read(3))
    kv_total_and_o(g, 0)
    g.stamp(6)
    s2_flag(g, 0)
    g.stamp(7)
    gemm2(g, 0, [g.w2_read(4), g.w2_read(5)])

def body_b(g):
    e = g.e; R = g.R; acc = g.acc; pr = g.pr
    ar, ai = pr['a1']
    E_ = [[(R.get(2), R.get(2)) for _ in range(2)] for _ in range(2)]
    prev = [(acc[0], acc[2]), (acc[1], acc[3])]
    for i in range(1, 8):
        L = []
        for t in range(2):
            d = E_[t][i & 1]
            L.append(cfma(d[0], d[1], ar, ai, prev[t][0], prev[t][1], acc[t] + 2*i, acc[2+t] + 2*i, sel=t)); prev[t] = d
        e([x for k in range(4) for x in (L[0][k], L[1][k])])
    H = R.get(4); a8r, a8i = pr['a8']
    for t in range(2):
        er, ei = prev[t]
        e(f"v_fma_f32 v{H+t}, v{a8r+t}, v{er}, v{er+1}\nv_fma_f32 v{H+2+t}, v{a8r+t}, v{ei}, v{ei+1}")
    for t in range(2):
        er, ei = prev[t]
        e(f"v_fma_f32 v{H+t}, -v{a8i+t}, v{ei}, v{H+t}\nv_fma_f32 v{H+2+t}, v{a8i+t}, v{er}, v{H+2+t}")
    t0, t1 = R.get(), R.get()
    e(f"""s_lshl_b32 s38, s{sW}, 10
    s_add_u32 s39, s38, {HXD}
    v_add_u32 v{t0}, s39, v{g.l16}
    ds_write_b128 v{t0}, {v(H,4)}
    v_add_u32 v{t0}, {-3584 & 0xffffffff}, v{t0}""")
    e.wait(lg=e.lg_token()); e("s_barrier")
    Q = [R.get(4) for _ in range(8)]
    for j in range(7): e(f"ds_read_b128 {v(Q[j],4)}, v{t0} offset:{j*512}")
    g.w2_issue(1, Sb); g.w2_issue(2, Sc)
    a16r, a16i = pr['a16']
    for j in range(1, 7): e(cfma(Q[j], Q[j]+2, a16r, a16i, Q[j-1], Q[j-1]+2, Q[j], Q[j]+2))
    Pw = Q[6]
    e(cfma(H, H+2, a16r, a16i, Pw, Pw+2, H, H+2))
    e(f"""s_lshl_b32 s38, s{sGRP}, 4
    s_add_u32 s38, s38, s{sTB}
    s_lshl_b32 s38, s38, 9
    s_add_u32 s38, s38, {WS_G - 512}
    s_lshl_b32 s{sT2}, s{sGRP}, 7
    s_add_u32 s{sT3}, s{sT2}, {FL_ST}
    s_lshl_b32 s39, s{sTB}, 2
    s_add_u32 s{sT2}, s{sT3}, s39
    s_cmp_eq_u32 s{sW}, 3
    s_cselect_b32 s38, s38, {OOB}
    s_cselect_b32 s{sT2}, s{sT2}, {OOB}
    v_cmp_lt_u32 vcc, 31, v0
    v_mov_b32 v{t1}, {OOB}
    v_cndmask_b32 v{t1}, v{t1}, v{g.l16}, vcc
    buffer_store_dwordx4 {v(H,4)}, v{t1}, {srd(SWS)}, s38 offen sc1""")
    tok = e.vm_token()
    g.stamp(2)
    cr, ci = pr['cf']; T = R.get(2)
    fill = gate(g)
    P2 = R.get(4)
    fill += [pk("mul", P2, Pw, cr), pk("mul", P2+2, Pw+2, cr), pk("fma", P2, Pw+2, ci, P2, None, [0]), pk("fma", P2+2, Pw, ci, P2+2)]
    E0 = R.get(4)
    for t in range(2):
        er, ei = prev[t]
        fill += [f"v_mul_f32 v{E0+t}, v{er}, v{cr+t}", f"v_mul_f32 v{E0+2+t}, v{ei}, v{cr+t}",
                 f"v_fma_f32 v{E0+t}, -v{ei}, v{ci+t}, v{E0+t}", f"v_fma_f32 v{E0+2+t}, v{er}, v{ci+t}, v{E0+2+t}"]
    for t in range(2):
        for i in range(8):
            ur, ui = acc[t] + 2*i, acc[2+t] + 2*i
            fill += [pk("mul", T, ci, ur, None, {0: t}), pk("mul", ur, cr, ur, None, {0: t}),
                     pk("fma", ur, ci, ui, ur, {0: t}, [0]), pk("fma", ui, cr, ui, T, {0: t})]
    sel = R.get(8)
    fill += [f"v_add_f32 v{t0}, v{g.sb}, v{g.sb}", f"v_and_b32 v{t1}, 1, v0", f"v_lshlrev_b32 v{t1}, 4, v{t1}", f"v_sub_u32 v{t1}, 16, v{t1}",
             f"v_lshrrev_b32 v{t0}, v{t1}, v{t0}",
             f"v_bfe_u32 v{t1}, v{g.n}, 2, 1", f"v_cmp_eq_u32 vcc, v{t1}, v{g.hh}", f"v_cndmask_b32 v{t0}, 0, v{t0}, vcc",
             f"v_lshrrev_b32 v{t1}, 3, v{g.n}", f"v_lshlrev_b32 v{t1}, 1, v{t1}", f"v_bfe_u32 v{sel}, v{g.n}, 1, 1", f"v_or_b32 v{t1}, v{t1}, v{sel}"]
    for r in range(8): fill += [f"v_cmp_eq_u32 vcc, {r}, v{t1}", f"v_cndmask_b32 v{sel+r}, 0, v{t0}, vcc"]
    e(fill[:24])
    flag(g, sT2, tok)
    e(fill[24:])
    for r in Q + [H]: R.put(r, 4)
    for t in range(2):
        for pp in E_[t]: R.put(pp[0], 2); R.put(pp[1], 2)
    R.put(T, 2); R.put(pr['cf'][0], 2); R.put(pr['cf'][1], 2); R.put(pr['a16'][0], 2); R.put(pr['a16'][1], 2); del pr['cf']; del pr['a16']
    R.put(g.gacc, 4)
    e(g.w2_read(0)); e.wait(lg=e.lg_token()); g.w2_issue(3, Sa)
    e.wait(vm=g.qtok); e("s_barrier")
    pro, groups = q_gemm(g)
    e(pro); e([x for gr in groups for x in gr])
    g.dump('q', [g.qacc + i for i in range(16)], 1)
    e(q_phi(g, 1))
    g.stamp(3)
    e(g.w2_read(1)); e(g.w2_read(2)); e.wait(lg=e.lg_token())
    g.w2_issue(4, Sb); g.w2_issue(5, Sc)
    Q = [R.get(4) for _ in range(8)]
    vo = [R.get() for _ in range(8)]
    e(f"""s_sub_u32 s38, s{sTB}, 16
    s_lshl_b32 s38, s38, 9
    v_lshlrev_b32 v{t1}, 12, v{g.hh}
    v_lshl_add_u32 v{t1}, v{g.n}, 4, v{t1}
    v_add_u32 v{vo[0]}, s38, v{t1}""")
    for i in range(1, 8): e(f"v_add_u32 v{vo[i]}, {i*512}, v{vo[0]}")
    e(f"""s_bfm_b64 s[{sM0}:{sM0+1}], s{sTB}, 0
    v_lshlrev_b32 v{t1}, 2, v{g.i16}""")
    poll(g, sT3, t1, f"s[{sM0}:{sM0+1}]")
    e(f"s_lshl_b32 s38, s{sGRP}, 13\ns_add_u32 s38, s38, {WS_G}")
    for i in range(8): e(f"buffer_load_dwordx4 {v(Q[i],4)}, v{vo[i]}, {srd(SWS)}, s38 offen sc1")
    e(g.w2_read(3))
    for r in vo: R.put(r)
    b1r, b1i = pr['a128']
    for j in range(1, 8): e(cfma(Q[j], Q[j]+2, b1r, b1i, Q[j-1], Q[j-1]+2, Q[j], Q[j]+2))
    A_, B_ = Q[7], Q[0]
    e([f"v_mov_b32 v{B_+k}, v{A_+k}" for k in range(4)])
    e([f"v_permlane32_swap_b32 v{A_+k}, v{B_+k}" for k in range(4)])
    e(cfma(B_, B_+2, pr['a1024'][0], pr['a1024'][1], A_, A_+2, B_, B_+2))
    e(cfma(P2, P2+2, pr['aown'][0], pr['aown'][1], B_, B_+2, P2, P2+2))
    I = [(Q[1], Q[1]+2), (Q[2], Q[2]+2)]
    for t in range(2):
        e(f"v_mov_b32 v{I[t][0]}, v{P2+t}\nv_mov_b32 v{I[t][1]}, v{P2+2+t}")
        e(f"v_fma_f32 v{I[t][0]+1}, v{a8r+t}, v{P2+t}, v{E0+t}\nv_fma_f32 v{I[t][1]+1}, v{a8r+t}, v{P2+2+t}, v{E0+2+t}")
    for t in range(2):
        e(f"v_fma_f32 v{I[t][0]+1}, -v{a8i+t}, v{P2+2+t}, v{I[t][0]+1}\nv_fma_f32 v{I[t][1]+1}, v{a8i+t}, v{P2+t}, v{I[t][1]+1}")
    prev = I
    for i in range(8):
        L = []
        for t in range(2):
            d = (acc[t] + 2*i, acc[2+t] + 2*i)
            L.append(cfma(d[0], d[1], ar, ai, prev[t][0], prev[t][1], d[0], d[1], sel=t)); prev[t] = d
        e([x for k in range(4) for x in (L[0][k], L[1][k])])
    g.dump('h', [a + i for a in acc for i in range(16)], 1)
    e(f"""s_lshl_b32 s38, s{sTB}, 2
    s_add_u32 s38, s38, s{sW}
    s_mul_i32 s38, s38, 98304
    s_lshl_b32 s39, s{sGRP}, 13
    s_add_u32 s38, s38, s39
    s_add_u32 s38, s38, {WS_A2}
    s_add_u32 s39, s38, 4096""")
    fr = [R.get(8) for _ in range(4)]
    for q in range(4):
        e(cvt8(fr[q], acc[q], 8, neg=(q >= 2)))
        e(f"{MF32} {v(acc[q],16)}, {v(fr[q],4)}, {v(sel,4)}, 0\n{MF32} {v(acc[q],16)}, {v(fr[q]+4,4)}, {v(sel+4,4)}, {v(acc[q],16)}")
    for q in range(4):
        e(cvt8(fr[q], acc[q], 8))
        for s in range(2): e(f"buffer_store_dwordx4 {v(fr[q]+4*s,4)}, v{g.l16}, {srd(SWS)}, s{38 + (q>>1)} offen offset:{(q&1)*2048 + s*1024} sc1")
    g.stamp(4)
    for r in fr: R.put(r, 8)
    for r in acc: R.put(r, 16)
    for r in Q + [P2, E0]: R.put(r, 4)
    for k in pr.values(): R.put(k[0], 2); R.put(k[1], 2)
    R.put(sel, 8); R.put(t0); R.put(t1)
    kv_total_and_o(g, 1)
    g.stamp(6)
    s2_flag(g, 1)
    g.stamp(7)
    gemm2(g, 1, [g.w2_read(4), g.w2_read(5)])
```

```python
import sys, json; sys.path.insert(0, "dev")
from gen import emit_file
path = sys.argv[1]; opt = json.loads(sys.argv[2]) if len(sys.argv) > 2 else {}
g = emit_file(path, opt)
print("instrs", g.e.count, "nops", g.e.nops, "dumps", g.dumps)
json.dump(g.dumps, open(path + ".dumps", "w"))
```
